```python
import torch

def _softmax(x, axis=-1):
    return torch.softmax(x, dim=axis)
def _gelu(x):
    return torch.nn.functional.gelu(x, approximate="tanh")
def _silu(x):
    return torch.nn.functional.silu(x)
def _sigmoid(x):
    return torch.sigmoid(x)
def _layernorm(x, axis=-1, eps=1e-5):
    m = x.mean(dim=axis, keepdim=True)
    v = x.var(dim=axis, keepdim=True, unbiased=False)
    return (x - m) / torch.sqrt(v + eps)
def _scatter_add(tgt, idx, src, axis=0):
    return tgt.clone().index_add_(axis, idx, src)
def _segment_sum(src, seg, n):
    out = torch.zeros((n,) + src.shape[1:], dtype=src.dtype)
    return out.index_add_(0, seg, src)
def _pad(x, pw):
    flat = tuple(v for pair in reversed(pw) for v in pair)
    return torch.nn.functional.pad(x, flat)

kernel_name = 'gated_mix__linear_kernel_hedgehog__glu_gated_geglu__prompt'

def setup_inputs():

    _w = (lambda a: (lambda t: t.to(torch.bfloat16) if t.is_floating_point() else t)(torch.as_tensor(a)))
    def _A_setup():
        B, S, D, H = 1, 2048, 1024, 32
        Dh = D // H
        return {
            "x": _w((lambda *s: torch.randn(*s, dtype=torch.bfloat16) * 0.05)(B, S, D)),
            "wqkv": _w((lambda *s: torch.randn(*s, dtype=torch.bfloat16) * 0.8)(D, 3 * D)),
            "w_phi": _w((lambda *s: torch.randn(*s, dtype=torch.bfloat16) * 0.8)(H, Dh, Dh) * (Dh ** -0.5)),
            "wo": _w((lambda *s: torch.randn(*s, dtype=torch.bfloat16) * 0.05)(D, D)),
        }
    _A_in = _A_setup()

    def _B_setup():
        B, S, Dm, Df = 1, 2048, 1024, 3584
        return {
            "x": _w((lambda *s: torch.randn(*s, dtype=torch.bfloat16) * 0.05)(B, S, Dm)),
            "w_gate": _w((lambda *s: torch.randn(*s, dtype=torch.bfloat16) * 1.6)(Dm, Df) * (Dm ** -0.5)),
            "w_up": _w((lambda *s: torch.randn(*s, dtype=torch.bfloat16) * 1.6)(Dm, Df) * (Dm ** -0.5)),
            "w_down": _w((lambda *s: torch.randn(*s, dtype=torch.bfloat16) * 1.6)(Df, Dm) * (Df ** -0.5)),
        }
    _B_in = _B_setup()

    return {
        "A_x": _A_in["x"],
        "A_wqkv": _A_in["wqkv"],
        "A_w_phi": _A_in["w_phi"],
        "A_wo": _A_in["wo"],
        "B_x": _B_in["x"],
        "B_w_gate": _B_in["w_gate"],
        "B_w_up": _B_in["w_up"],
        "B_w_down": _B_in["w_down"],
        "gate_w": _w((lambda *s: torch.randn(*s, dtype=torch.bfloat16) * 0.05)(1024) * 16.0),
    }

def reference(A_x, A_wqkv, A_w_phi, A_wo, B_x, B_w_gate, B_w_up, B_w_down, gate_w):
    def _A_ref(x, wqkv, w_phi, wo):
        B, S, D = x.shape
        H = 32; Dh = D // H
        qkv = (lambda x, *d: x.permute(*d))((x @ wqkv).reshape(B, S, 3, H, Dh), 2, 0, 3, 1, 4)
        q, k, v = qkv[0], qkv[1], qkv[2]
        pq = torch.einsum("bhsd,hdf->bhsf", q, w_phi)
        pk = torch.einsum("bhsd,hdf->bhsf", k, w_phi)
        phi_q = torch.concatenate([_softmax(pq, axis=-1), _softmax(-pq, axis=-1)], axis=-1)
        phi_k = torch.concatenate([_softmax(pk, axis=-1), _softmax(-pk, axis=-1)], axis=-1)
        kv = torch.einsum("bhsf,bhsd->bhfd", phi_k, v)
        z  = torch.einsum("bhsf->bhf", phi_k)
        num = torch.einsum("bhqf,bhfd->bhqd", phi_q, kv)
        den = torch.einsum("bhqf,bhf->bhq", phi_q, z)[..., None] + 1e-6
        o = num / den
        return (lambda x, *d: x.permute(*d))(o, 0, 2, 1, 3).reshape(B, S, D) @ wo

    def _B_ref(x, w_gate, w_up, w_down):
        g = torch.einsum("bsd,df->bsf", x, w_gate)
        u = torch.einsum("bsd,df->bsf", x, w_up)
        h = _gelu(g) * u
        return torch.einsum("bsf,fd->bsd", h, w_down)

    x = A_x
    g = _sigmoid((x * gate_w).sum(-1, keepdims=True))
    a = _A_ref(x, A_wqkv, A_w_phi, A_wo)
    b = _B_ref(x, B_w_gate, B_w_up, B_w_down)
    return g * a + (1 - g) * b
```

```python
import re

_REG_RE = re.compile(r'\b([vas])\[(\d+):(\d+)\]|\b([vas])(\d+)\b|\b(vcc|exec|m0)\b')

TRANS = ('v_exp_f32', 'v_log_f32', 'v_rcp_f32', 'v_rsq_f32', 'v_sqrt_f32', 'v_sin_f32', 'v_cos_f32')


def regs_of(tok):
    out = []
    for m in _REG_RE.finditer(tok):
        if m.group(1):
            for i in range(int(m.group(2)), int(m.group(3)) + 1):
                out.append((m.group(1), i))
        elif m.group(4):
            out.append((m.group(4), int(m.group(5))))
        else:
            out.append((m.group(6), 0))
    return out


class Ins:
    __slots__ = ('text', 'mn', 'kind', 'wr', 'rd', 'ws', 'srcc', 'ab', 'dpp', 'wide_store', 'store_data')

    def __init__(self, text):
        self.text = text
        t = text.split(';')[0].strip()
        parts = t.split(None, 1)
        self.mn = mn = parts[0]
        rest = parts[1] if len(parts) > 1 else ''
        ops = [o.strip() for o in rest.split(',')] if rest else []
        self.wr, self.rd = set(), set()
        self.srcc, self.ab = set(), set()
        self.dpp = ('quad_perm' in rest or 'row_' in rest) and mn.startswith('v_')
        self.wide_store = False
        self.store_data = set()
        self.ws = 1
        if mn == 's_nop':
            self.kind = 'nop'
            self.ws = int(ops[0], 0) + 1
            return
        if mn in ('s_waitcnt', 's_barrier', 's_endpgm', 's_setprio', 's_sleep', 's_branch') or mn.startswith('s_cbranch'):
            self.kind = 'other'
            return
        if mn.startswith('s_cmp') or mn.startswith('s_bitcmp'):
            self.kind = 'salu'
            for o in ops:
                self.rd.update(regs_of(o))
            return
        if mn.startswith('s_load') or mn.startswith('s_memtime') or mn.startswith('s_memrealtime'):
            self.kind = 'smem'
            self.wr.update(regs_of(ops[0]))
            for o in ops[1:]:
                self.rd.update(regs_of(o))
            return
        if mn.startswith('s_'):
            self.kind = 'salu'
            self.wr.update(regs_of(ops[0]))
            for o in ops[1:]:
                self.rd.update(regs_of(o))
            if 'saveexec' in mn:
                self.wr.add(('exec', 0)); self.rd.add(('exec', 0))
            return
        if mn.startswith('buffer_') or mn.startswith('global_'):
            self.kind = 'vmem'
            if mn in ('buffer_wbl2', 'buffer_inv'):
                return
            is_lds = re.search(r'\blds\b', rest) is not None
            if 'store' in mn or 'atomic' in mn:
                for o in ops:
                    self.rd.update(regs_of(o))
                data = ops[0] if mn.startswith('buffer_') else ops[1]
                self.store_data = set(regs_of(data))
                if mn.endswith('x4') or mn.endswith('x3'):
                    self.wide_store = True
                if 'atomic' in mn and 'sc0' in rest:
                    self.wr.update(regs_of(ops[0]))
            elif is_lds:
                for o in ops:
                    self.rd.update(regs_of(o))
                self.rd.add(('m0', 0))
            else:
                self.wr.update(regs_of(ops[0]))
                for o in ops[1:]:
                    self.rd.update(regs_of(o))
            return
        if mn.startswith('ds_'):
            self.kind = 'ds'
            if mn.startswith('ds_write'):
                for o in ops:
                    self.rd.update(regs_of(o))
            else:
                self.wr.update(regs_of(ops[0]))
                for o in ops[1:]:
                    self.rd.update(regs_of(o))
            return
        if mn.startswith('v_mfma'):
            self.kind = 'mfma'
            self.wr.update(regs_of(ops[0]))
            self.ab.update(regs_of(ops[1])); self.ab.update(regs_of(ops[2]))
            self.srcc.update(regs_of(ops[3]))
            self.rd = self.ab | self.srcc
            return
        base = mn.replace('_e32', '').replace('_e64', '').replace('_dpp', '')
        self.kind = 'trans' if base in TRANS else 'valu'
        if 'permlane' in mn and 'swap' in mn:
            for o in ops:
                self.wr.update(regs_of(o)); self.rd.update(regs_of(o))
            return
        self.wr.update(regs_of(ops[0]))
        k = 1
        if base in ('v_add_co_u32', 'v_sub_co_u32', 'v_addc_co_u32', 'v_subb_co_u32', 'v_subrev_co_u32'):
            self.wr.update(regs_of(ops[1])); k = 2
        for o in ops[k:]:
            self.rd.update(regs_of(o))
        if base.startswith('v_fmac') or base.startswith('v_dot2c') or base.startswith('v_pk_fmac'):
            self.rd.update(regs_of(ops[0]))


def is_vec(r):
    return r[0] in ('v', 'a')


def need_ws(p, c):
    n = 0
    pv = p.kind in ('valu', 'trans')
    cv = c.kind in ('valu', 'trans')
    if pv:
        wv = {r for r in p.wr if is_vec(r)}
        ws_ = {r for r in p.wr if r[0] in ('s', 'vcc')}
        if c.kind == 'mfma' and wv & c.rd:
            n = max(n, 2)
        if cv and 'permlane' in c.mn and wv & c.rd:
            n = max(n, 2)
        if cv and c.dpp and wv & c.rd:
            n = max(n, 2)
        if cv and (c.mn.startswith('v_readfirstlane') or c.mn.startswith('v_readlane')) and wv & c.rd:
            n = max(n, 1)
        if p.kind == 'trans' and c.kind == 'valu' and wv & (c.rd | c.wr):
            n = max(n, 1)
        if p.kind == 'trans' and c.kind in ('vmem', 'ds', 'mfma') and wv & c.rd:
            n = max(n, 2)
        if ws_:
            if cv and ws_ & c.rd:
                n = max(n, 2)
            if c.kind == 'vmem' and ws_ & c.rd:
                n = max(n, 5)
            if c.kind == 'salu' and ws_ & c.rd:
                n = max(n, 2)
        if ('exec', 0) in p.wr:
            n = max(n, 5)
    if p.kind == 'mfma':
        d = p.wr
        if c.kind == 'mfma':
            if d & c.ab:
                n = max(n, 8)
            if d & c.srcc and d != c.srcc:
                n = max(n, 6)
            if d & c.wr and d != c.srcc:
                n = max(n, 8)
        elif cv:
            if d & (c.rd | c.wr):
                n = max(n, 8)
            if p.srcc & c.wr:
                n = max(n, 3)
        elif c.kind in ('vmem', 'ds'):
            if d & (c.rd | c.wr):
                n = max(n, 8)
    if p.kind == 'salu' and ('m0', 0) in p.wr and c.kind in ('vmem', 'ds') and ('m0', 0) in c.rd:
        n = max(n, 1)
    if p.kind == 'vmem' and p.wide_store and p.store_data & c.wr:
        n = max(n, 2)
    return n


class Asm:
    def __init__(self):
        self.lines = []
        self.hist = []
        self.count = 0

    def raw(self, s):
        self.lines.append(s)

    def label(self, name):
        self.lines.append(name + ':')

    def comment(self, s):
        self.lines.append('    ; ' + s)

    def __call__(self, text):
        ins = Ins(text)
        need = 0
        dist = 0
        for p in reversed(self.hist):
            if dist >= 20:
                break
            n = need_ws(p, ins)
            if n > dist:
                need = max(need, n - dist)
            dist += p.ws
        while need > 0:
            k = min(need, 16)
            nop = Ins('s_nop %d' % (k - 1))
            self.lines.append('    s_nop %d' % (k - 1))
            self.hist.append(nop)
            need -= k
        self.lines.append('    ' + text)
        self.hist.append(ins)
        if len(self.hist) > 40:
            self.hist = self.hist[-40:]
        self.count += 1

    def flush_hazards(self):
        self('s_nop 7')
        self('s_nop 1')

    def text(self):
        return '\n'.join(self.lines) + '\n'


def vr(b, n=1):
    return 'v%d' % b if n == 1 else 'v[%d:%d]' % (b, b + n - 1)


def ar(b, n=1):
    return 'a%d' % b if n == 1 else 'a[%d:%d]' % (b, b + n - 1)


def sr(b, n=1):
    return 's%d' % b if n == 1 else 's[%d:%d]' % (b, b + n - 1)
```

```python
import sys, struct
from asmlib import Asm, vr, ar, sr

NAME = 'gated_mix__linear_kernel_hedgehog__glu_gated_geglu__prompt'

A2_OFF = 0
PHIQ_OFF = 0x1200000
KVP_OFF = 0x1A00000
G_OFF = 0x1D00000
WS_SIZE = 0x1E00000


def f32bits(x):
    return struct.unpack('<I', struct.pack('<f', x))[0]


LOG2E = 1.4426950408889634
GC0 = -2.0 * 0.7978845608028654 * LOG2E
GC1 = GC0 * 0.044715

SLOT = 73728
XA_OFF = 0
QKV_OFF = 32768
GATE_OFF = 45056
UP_OFF = 59392
WPHI_OFF = 147456
K1_LDS = 149504
PK_OFF = 0
PK_PITCH = 160
V_OFF = 40960
V_PITCH = 96


def load_kernargs(a):
    a('s_load_dwordx16 s[4:19], s[0:1], 0')
    a('s_load_dwordx8 s[20:27], s[0:1], 64')


def make_srd(a, d, lo, hi, size):
    a('s_mov_b32 s%d, s%d' % (d, lo))
    a('s_and_b32 s%d, s%d, 0xffff' % (d + 1, hi))
    a('s_mov_b32 s%d, 0x%x' % (d + 2, size))
    a('s_mov_b32 s%d, 0x20000' % (d + 3))


class LgkmQ:
    def __init__(self, init=None):
        self.q = list(init or [])

    def issue(self, tag):
        self.q.append(tag)

    def need(self, a, tags):
        idx = -1
        for i, t in enumerate(self.q):
            if t in tags:
                idx = i
        if idx < 0:
            return
        n = len(self.q) - idx - 1
        n = min(n, 15)
        a('s_waitcnt lgkmcnt(%d)' % n)
        self.q = self.q[len(self.q) - n:] if n > 0 else []

    def drain(self):
        self.q = []


def cross_lane_pair(a, A, B, T, op):
    a('v_permlane16_swap_b32 v%d, v%d' % (A, B))
    a('%s v%d, v%d, v%d' % (op, A, A, B))
    a('v_mov_b32 v%d, v%d' % (T, A))
    a('v_permlane32_swap_b32 v%d, v%d' % (A, T))
    a('%s v%d, v%d, v%d' % (op, A, A, T))
    a('v_mov_b32 v%d, v%d' % (B, A))
    a('v_permlane16_swap_b32 v%d, v%d' % (A, B))


class Stream:
    def __init__(self):
        self.l = []

    def __call__(self, t):
        self.l.append(t)


def interleave(a, streams):
    n = max(len(s.l) for s in streams)
    for i in range(n):
        for s in streams:
            if i < len(s.l):
                a(s.l[i])


V_LANE16 = 160
V_XD = 161
V_WD = 163
V_XA = 168
V_GU = 172
V_QK = 174
V_T = 178
S_J, S_MT, S_W, S_HALF, S_MQ = 28, 29, 30, 31, 32
SRD_X = 36
SRD_W = 40
S_WOFF = 60
S_WSTR = 65
S_XOFF = 70
S_MX, S_MB = 72, 73
S_CNT = 74
SRD_WS = 76
S_T = 80


def acc(jn, mb):
    return (jn * 4 + mb) * 4


def k1_wread(a, q, half, jn, slot, kk):
    dst = 32 + 4 * jn
    for p in range(2):
        if half == 0:
            b = jn % 5
            up = jn // 5
            addr = V_GU + slot
            off = kk * 7168 + p * 1792 + b * 32 + up * 14336
        else:
            if jn < 4:
                b = jn % 2
                up = jn // 2
                addr = V_GU + slot
                off = kk * 7168 + p * 1792 + b * 32 + up * 14336
            else:
                mat = (jn - 4) // 2
                b = (jn - 4) % 2
                addr = V_QK + slot * 2 + b
                off = mat * 4096 + kk * 2048 + p * 512
        a('ds_read_b64_tr_b16 %s, v%d offset:%d' % (ar(dst + 2 * p, 2), addr, off))
        q.issue(('W', jn))


def k1_xread(a, q, mb, slot, kk, buf):
    a('ds_read_b128 %s, v%d offset:%d' % (ar(buf * 16 + mb * 4, 4), V_XA + slot * 2 + kk, mb * 2048))
    q.issue(('X', buf, mb))


def k1_dma_list(slot):
    l = []
    for i in range(4):
        l.append(('s_add_u32 m0, s%d, 0x%x' % (S_MX, slot * SLOT + i * 1024),
                  'buffer_load_dwordx4 v%d, s[%d:%d], s%d offen lds' % (V_XD + (i & 1), SRD_X, SRD_X + 3, S_XOFF + (i >> 1))))
    for t in range(5):
        l.append(('s_add_u32 m0, s%d, 0x%x' % (S_MB, slot * SLOT + t * 1024),
                  'buffer_load_dwordx4 v%d, s[%d:%d], s%d offen lds' % (V_WD + t, SRD_W + 4 * t, SRD_W + 4 * t + 3, S_WOFF + t)))
    return l


def k1_advance(a):
    a('s_add_u32 s%d, s%d, 128' % (S_XOFF, S_XOFF))
    a('s_add_u32 s%d, s%d, 128' % (S_XOFF + 1, S_XOFF + 1))
    for t in range(5):
        a('s_add_u32 s%d, s%d, s%d' % (S_WOFF + t, S_WOFF + t, S_WSTR + t))


def k1_substep(a, q, half, slot, kk, nxt, dma):
    buf = kk
    nbuf = kk ^ 1
    barrier = (kk == 1 and nxt is not None)
    dl = k1_dma_list(slot) if dma else []
    for jn in range(10):
        q.need(a, [('W', jn)] + [('X', buf, m) for m in range(4)])
        pend_dma = None
        if barrier and jn >= 2 and dl:
            pend_dma = [dl.pop(0)]
            if jn == 9:
                pend_dma += dl
                dl = []
        for mb in range(4):
            if pend_dma and mb < len(pend_dma) * 2 and mb % 2 == 0:
                a(pend_dma[mb // 2][0])
            c = acc(jn, mb)
            a('v_mfma_f32_16x16x32_bf16 %s, %s, %s, %s' % (vr(c, 4), ar(32 + 4 * jn, 4), ar(buf * 16 + mb * 4, 4), vr(c, 4)))
            if pend_dma and mb < len(pend_dma) * 2 and mb % 2 == 0:
                a(pend_dma[mb // 2][1])
        if nxt is None:
            continue
        ns, nk = nxt
        if barrier:
            if jn == 1:
                a('s_waitcnt vmcnt(0) lgkmcnt(0)')
                q.drain()
                a('s_barrier')
                for mb in range(4):
                    k1_xread(a, q, mb, ns, nk, nbuf)
                k1_wread(a, q, half, 0, ns, nk)
                k1_wread(a, q, half, 1, ns, nk)
            elif jn > 1:
                k1_wread(a, q, half, jn, ns, nk)
        else:
            if jn < 2:
                k1_xread(a, q, 2 * jn, ns, nk, nbuf)
                k1_xread(a, q, 2 * jn + 1, ns, nk, nbuf)
            k1_wread(a, q, half, jn, ns, nk)
    if dma:
        k1_advance(a)


def k1_pair(a, q, half, dma, last):
    k1_substep(a, q, half, 0, 0, (0, 1), False)
    k1_substep(a, q, half, 0, 1, (1, 0), dma)
    k1_substep(a, q, half, 1, 0, (1, 1), False)
    k1_substep(a, q, half, 1, 1, None if last else (0, 0), dma)


def gelu_block(a, G, U, T):
    s = Stream()
    for h in (0, 2):
        s('v_pk_mul_f32 %s, %s, %s' % (vr(T + h, 2), vr(G + h, 2), vr(G + h, 2)))
    for h in (0, 2):
        s('v_pk_fma_f32 %s, %s, s[90:91], %s' % (vr(T + h, 2), vr(T + h, 2), vr(V_T, 2)))
    for h in (0, 2):
        s('v_pk_mul_f32 %s, %s, %s' % (vr(T + h, 2), vr(T + h, 2), vr(G + h, 2)))
    for i in range(4):
        s('v_exp_f32 v%d, v%d' % (T + i, T + i))
    for h in (0, 2):
        s('v_pk_mul_f32 %s, %s, %s' % (vr(U + h, 2), vr(U + h, 2), vr(G + h, 2)))
    for h in (0, 2):
        s('v_pk_add_f32 %s, %s, s[92:93]' % (vr(T + h, 2), vr(T + h, 2)))
    for i in range(4):
        s('v_rcp_f32 v%d, v%d' % (T + i, T + i))
    for h in (0, 2):
        s('v_pk_mul_f32 %s, %s, %s' % (vr(U + h, 2), vr(U + h, 2), vr(T + h, 2)))
    s('v_cvt_pk_bf16_f32 v%d, v%d, v%d' % (G, U, U + 1))
    s('v_cvt_pk_bf16_f32 v%d, v%d, v%d' % (G + 1, U + 2, U + 3))
    return s


def k1_gelu(a, nblk, tempbase):
    a('s_mov_b32 s90, 0x%x' % f32bits(GC1))
    a('s_mov_b32 s91, 0x%x' % f32bits(GC1))
    a('s_mov_b32 s92, 1.0')
    a('s_mov_b32 s93, 1.0')
    a('v_mov_b32 v%d, 0x%x' % (V_T, f32bits(GC0)))
    a('v_mov_b32 v%d, 0x%x' % (V_T + 1, f32bits(GC0)))
    for b in range(nblk):
        a('s_add_u32 s85, s84, %d' % b)
        a('s_lshr_b32 s86, s85, 1')
        a('s_lshl_b32 s86, s86, 17')
        a('s_and_b32 s85, s85, 1')
        a('s_lshl_b32 s85, s85, 3')
        a('s_add_u32 s86, s86, s85')
        a('s_add_u32 s86, s86, s87')
        streams = [gelu_block(a, acc(b, mb), acc(nblk + b, mb), tempbase + 4 * mb) for mb in range(4)]
        interleave(a, streams)
        for mb in range(4):
            a('buffer_store_dwordx2 %s, v%d, s[%d:%d], s86 offen offset:%d' % (vr(acc(b, mb), 2), V_LANE16, SRD_WS, SRD_WS + 3, mb * 1024))


def softmax_stream(X0, X1, EN, T):
    s = Stream()
    M, N, T2, T3 = T, T + 1, T + 2, T + 3
    x = [X0, X0 + 1, X0 + 2, X0 + 3, X1, X1 + 1, X1 + 2, X1 + 3]
    s('v_max3_f32 v%d, v%d, v%d, v%d' % (M, x[0], x[1], x[2]))
    s('v_max3_f32 v%d, -v%d, -v%d, -v%d' % (N, x[0], x[1], x[2]))
    s('v_max3_f32 v%d, v%d, v%d, v%d' % (T2, x[3], x[4], x[5]))
    s('v_max3_f32 v%d, -v%d, -v%d, -v%d' % (T3, x[3], x[4], x[5]))
    s('v_max3_f32 v%d, v%d, v%d, v%d' % (M, x[6], x[7], M))
    s('v_max3_f32 v%d, -v%d, -v%d, v%d' % (N, x[6], x[7], N))
    s('v_max_f32 v%d, v%d, v%d' % (M, M, T2))
    s('v_max_f32 v%d, v%d, v%d' % (N, N, T3))
    cross_lane_pair(s, M, N, T2, 'v_max_f32')
    s('v_mul_f32 v%d, s94, v%d' % (M, M))
    s('v_mul_f32 v%d, s94, v%d' % (N, N))
    for i in range(8):
        s('v_fma_f32 v%d, -v%d, s94, -v%d' % (EN + i, x[i], N))
    for i in range(8):
        s('v_fma_f32 v%d, v%d, s94, -v%d' % (x[i], x[i], M))
    for i in range(8):
        s('v_exp_f32 v%d, v%d' % (EN + i, EN + i))
    for i in range(8):
        s('v_exp_f32 v%d, v%d' % (x[i], x[i]))
    s('v_add_f32 v%d, v%d, v%d' % (N, EN, EN + 1))
    s('v_add_f32 v%d, v%d, v%d' % (T3, EN + 2, EN + 3))
    s('v_add_f32 v%d, v%d, v%d' % (M, x[0], x[1]))
    s('v_add_f32 v%d, v%d, v%d' % (T2, x[2], x[3]))
    s('v_add_f32 v%d, v%d, v%d' % (N, N, EN + 4))
    s('v_add_f32 v%d, v%d, v%d' % (T3, T3, EN + 5))
    s('v_add_f32 v%d, v%d, v%d' % (M, M, x[4]))
    s('v_add_f32 v%d, v%d, v%d' % (T2, T2, x[5]))
    s('v_add_f32 v%d, v%d, v%d' % (N, N, EN + 6))
    s('v_add_f32 v%d, v%d, v%d' % (T3, T3, EN + 7))
    s('v_add_f32 v%d, v%d, v%d' % (M, M, x[6]))
    s('v_add_f32 v%d, v%d, v%d' % (T2, T2, x[7]))
    s('v_add_f32 v%d, v%d, v%d' % (N, N, T3))
    s('v_add_f32 v%d, v%d, v%d' % (M, M, T2))
    cross_lane_pair(s, M, N, T2, 'v_add_f32')
    s('v_rcp_f32 v%d, v%d' % (M, M))
    s('v_rcp_f32 v%d, v%d' % (N, N))
    for i in range(8):
        s('v_mul_f32 v%d, v%d, v%d' % (x[i], x[i], M))
    for i in range(8):
        s('v_mul_f32 v%d, v%d, v%d' % (EN + i, EN + i, N))
    s('v_cvt_pk_bf16_f32 v%d, v%d, v%d' % (X0, x[0], x[1]))
    s('v_cvt_pk_bf16_f32 v%d, v%d, v%d' % (X0 + 1, x[2], x[3]))
    s('v_cvt_pk_bf16_f32 v%d, v%d, v%d' % (X0 + 2, x[4], x[5]))
    s('v_cvt_pk_bf16_f32 v%d, v%d, v%d' % (X0 + 3, x[6], x[7]))
    for i in range(4):
        s('v_cvt_pk_bf16_f32 v%d, v%d, v%d' % (EN + i, EN + 2 * i, EN + 2 * i + 1))
    return s


def k1_phi(a, jn0):
    FR = 8
    P = 24
    for mb in range(4):
        c0, c1 = acc(jn0, mb), acc(jn0 + 1, mb)
        a('v_cvt_pk_bf16_f32 v%d, v%d, v%d' % (FR + 4 * mb, c0, c0 + 1))
        a('v_cvt_pk_bf16_f32 v%d, v%d, v%d' % (FR + 4 * mb + 1, c0 + 2, c0 + 3))
        a('v_cvt_pk_bf16_f32 v%d, v%d, v%d' % (FR + 4 * mb + 2, c1, c1 + 1))
        a('v_cvt_pk_bf16_f32 v%d, v%d, v%d' % (FR + 4 * mb + 3, c1 + 2, c1 + 3))
    for mb in range(4):
        for fb in range(2):
            d = P + fb * 16 + mb * 4
            a('v_mfma_f32_16x16x32_bf16 %s, %s, %s, 0' % (vr(d, 4), vr(4 * fb, 4), vr(FR + 4 * mb, 4)))
    a('s_mov_b32 s94, 0x%x' % f32bits(LOG2E))
    EN = acc(jn0, 0)
    streams = [softmax_stream(P + 4 * mb, P + 16 + 4 * mb, EN + 8 * mb, FR + 4 * mb) for mb in range(4)]
    interleave(a, streams)


def gen_k1(a):
    a.raw('.p2align 8')
    a.raw('k1_kernel:')
    a('s_cmp_ge_u32 s2, 256')
    a('s_cbranch_scc1 K1_END')
    load_kernargs(a)
    a('v_lshrrev_b32 v1, 6, v0')
    a('v_and_b32 v2, 63, v0')
    a('v_readfirstlane_b32 s%d, v1' % S_W)
    a('s_and_b32 s3, s2, 7')
    a('s_lshr_b32 s33, s2, 3')
    a('s_and_b32 s34, s33, 3')
    a('s_lshl_b32 s3, s3, 2')
    a('s_add_u32 s%d, s3, s34' % S_J)
    a('s_lshr_b32 s%d, s33, 2' % S_MT)
    a('s_lshr_b32 s%d, s%d, 2' % (S_HALF, S_W))
    a('s_and_b32 s%d, s%d, 3' % (S_MQ, S_W))
    a('v_lshlrev_b32 v%d, 4, v2' % V_LANE16)
    a('v_and_b32 v3, 15, v2')
    a('v_lshrrev_b32 v4, 4, v2')
    a('v_bfe_u32 v5, v2, 2, 2')
    a('v_and_b32 v6, 3, v2')
    a('v_and_b32 v7, 1, v4')
    a('v_lshrrev_b32 v8, 1, v4')
    a('s_waitcnt lgkmcnt(0)')
    a('s_lshl_b32 s80, s%d, 19' % S_MT)
    a('s_add_u32 s80, s4, s80')
    a('s_addc_u32 s81, s5, 0')
    make_srd(a, SRD_X, 80, 81, 256 * 2048)
    make_srd(a, SRD_WS, 26, 27, WS_SIZE)
    a('s_cmp_ge_u32 s%d, 2' % S_W)
    a('s_cbranch_scc1 K1_NOPHI')
    make_srd(a, 80, 8, 9, 65536)
    a('s_lshl_b32 s84, s%d, 11' % S_J)
    a('s_lshl_b32 s85, s%d, 10' % S_W)
    a('s_add_u32 s84, s84, s85')
    a('s_add_u32 m0, s85, 0x%x' % WPHI_OFF)
    a('s_nop 0')
    a('buffer_load_dwordx4 v%d, s[80:83], s84 offen lds' % V_LANE16)
    a.label('K1_NOPHI')
    a('v_lshrrev_b32 v9, 3, v2')
    a('v_and_b32 v10, 7, v2')
    a('s_lshl_b32 s80, s%d, 5' % S_W)
    for e in range(2):
        a('v_xor_b32 v11, v10, v4')
        if e:
            a('v_xor_b32 v11, 4, v11')
        a('v_add_u32 v12, s80, v9')
        if e:
            a('v_add_u32 v12, 8, v12')
        a('v_lshlrev_b32 v12, 11, v12')
        a('v_lshl_add_u32 v%d, v11, 4, v12' % (V_XD + e))
    a('s_mov_b32 s%d, 0' % S_XOFF)
    a('s_mov_b32 s%d, 32768' % (S_XOFF + 1))
    a('s_lshl_b32 s%d, s%d, 12' % (S_MX, S_W))
    a('s_mul_i32 s%d, s%d, 5120' % (S_MB, S_W))
    a('s_add_u32 s%d, s%d, %d' % (S_MB, S_MB, QKV_OFF))
    for t in range(5):
        d = SRD_W + 4 * t
        a('s_mul_i32 s80, s%d, 5' % S_W)
        a('s_add_u32 s80, s80, %d' % t)
        a('s_mov_b32 s%d, 0' % (S_WOFF + t))
        a('s_mov_b32 s%d, 0x20000' % (d + 3))
        a('s_cmp_lt_u32 s80, 12')
        a('s_cbranch_scc0 K1_WGU%d' % t)
        a('s_mov_b32 s%d, s6' % d)
        a('s_and_b32 s%d, s7, 0xffff' % (d + 1))
        a('s_mov_b32 s%d, 0x%x' % (d + 2, 1024 * 6144))
        a('s_mov_b32 s%d, 0x%x' % (S_WSTR + t, 64 * 6144))
        a('s_and_b32 s81, s80, 3')
        a('s_lshl_b32 s81, s81, 4')
        a('v_lshrrev_b32 v9, 2, v2')
        a('v_add_u32 v9, s81, v9')
        a('v_lshlrev_b32 v10, 1, v7')
        a('v_xor_b32 v10, v10, v6')
        a('s_lshr_b32 s81, s80, 2')
        a('s_lshl_b32 s81, s81, 11')
        a('s_lshl_b32 s82, s%d, 6' % S_J)
        a('s_add_u32 s81, s81, s82')
        a('s_movk_i32 s82, 6144')
        a('s_branch K1_WJ%d' % t)
        a.label('K1_WGU%d' % t)
        a('s_cmp_lt_u32 s80, 26')
        a('s_cselect_b32 s%d, s14, s16' % d)
        a('s_cselect_b32 s81, s15, s17')
        a('s_cselect_b32 s82, 12, 26')
        a('s_and_b32 s%d, s81, 0xffff' % (d + 1))
        a('s_mov_b32 s%d, 0x%x' % (d + 2, 1024 * 7168))
        a('s_mov_b32 s%d, 0x%x' % (S_WSTR + t, 64 * 7168))
        a('s_sub_u32 s80, s80, s82')
        a('s_lshl_b32 s80, s80, 6')
        a('v_add_u32 v11, s80, v2')
        a('v_mul_u32_u24 v9, 4682, v11')
        a('v_lshrrev_b32 v9, 16, v9')
        a('v_mul_u32_u24 v10, 14, v9')
        a('v_sub_u32 v10, v11, v10')
        a('s_mul_i32 s81, s%d, 224' % S_J)
        a('s_movk_i32 s82, 7168')
        a.label('K1_WJ%d' % t)
        a('v_and_b32 v11, 0x33, v9')
        a('v_and_b32 v12, 4, v9')
        a('v_lshlrev_b32 v12, 1, v12')
        a('v_or_b32 v11, v11, v12')
        a('v_and_b32 v12, 8, v9')
        a('v_lshrrev_b32 v12, 1, v12')
        a('v_or_b32 v11, v11, v12')
        a('v_mul_lo_u32 v11, v11, s82')
        a('v_lshl_add_u32 v11, v10, 4, v11')
        a('v_add_u32 v%d, s81, v11' % (V_WD + t))
    for m0, ins in k1_dma_list(0):
        a(m0)
        a(ins)
    k1_advance(a)
    make_srd(a, 80, 20, 21, 2048)
    a('s_lshl_b32 s84, s%d, 3' % S_J)
    a('s_add_u32 s84, s84, s%d' % S_W)
    a('s_lshl_b32 s85, s84, 11')
    a('v_lshlrev_b32 v9, 5, v2')
    a('buffer_load_dwordx4 v[16:19], v9, s[%d:%d], s85 offen' % (SRD_X, SRD_X + 3))
    a('buffer_load_dwordx4 v[20:23], v9, s[%d:%d], s85 offen offset:16' % (SRD_X, SRD_X + 3))
    a('buffer_load_dwordx4 v[24:27], v9, s[80:83], 0 offen')
    a('buffer_load_dwordx4 v[28:31], v9, s[80:83], 0 offen offset:16')
    for m0, ins in k1_dma_list(1):
        a(m0)
        a(ins)
    k1_advance(a)
    a('s_lshl_b32 s86, s%d, 6' % S_MQ)
    a('v_add_u32 v9, s86, v3')
    a('v_lshlrev_b32 v9, 7, v9')
    a('v_lshrrev_b32 v10, 1, v3')
    a('v_xor_b32 v10, v10, v4')
    a('v_lshl_add_u32 v%d, v10, 4, v9' % V_XA)
    a('v_xor_b32 v%d, 64, v%d' % (V_XA + 1, V_XA))
    a('v_add_u32 v%d, 0x%x, v%d' % (V_XA + 2, SLOT, V_XA))
    a('v_add_u32 v%d, 0x%x, v%d' % (V_XA + 3, SLOT, V_XA + 1))
    a('v_lshlrev_b32 v9, 4, v8')
    a('v_lshl_add_u32 v9, v7, 2, v9')
    a('v_add_u32 v9, v9, v5')
    a('s_and_b32 s86, s%d, 1' % S_J)
    a('s_cmp_eq_u32 s86, 0')
    a('s_cselect_b32 s87, 2, 0')
    a('s_cselect_b32 s88, 0, 5')
    a('s_cmp_eq_u32 s%d, 0' % S_HALF)
    a('s_cselect_b32 s87, s87, s88')
    a('s_mul_i32 s35, s%d, 7' % S_J)
    a('s_add_u32 s35, s35, s87')
    a('s_lshl_b32 s87, s87, 5')
    a('s_add_u32 s87, s87, %d' % GATE_OFF)
    a('v_mul_u32_u24 v10, 224, v9')
    a('v_lshl_add_u32 v10, v6, 3, v10')
    a('v_add_u32 v%d, s87, v10' % V_GU)
    a('v_add_u32 v%d, 0x%x, v%d' % (V_GU + 1, SLOT, V_GU))
    a('v_lshlrev_b32 v10, 6, v9')
    a('v_lshrrev_b32 v11, 1, v6')
    a('v_lshlrev_b32 v12, 1, v7')
    a('v_xor_b32 v11, v11, v12')
    a('v_lshl_add_u32 v10, v11, 4, v10')
    a('v_and_b32 v11, 1, v6')
    a('v_lshl_add_u32 v10, v11, 3, v10')
    a('v_add_u32 v%d, 0x%x, v10' % (V_QK, QKV_OFF))
    a('v_xor_b32 v%d, 32, v%d' % (V_QK + 1, V_QK))
    a('v_add_u32 v%d, 0x%x, v%d' % (V_QK + 2, SLOT, V_QK))
    a('v_add_u32 v%d, 0x%x, v%d' % (V_QK + 3, SLOT, V_QK + 1))
    a('v_mov_b32 v%d, v3' % (V_T + 2))
    a('v_mov_b32 v%d, v4' % (V_T + 3))
    a('v_lshl_add_u32 v%d, v4, 2, v5' % (V_T + 4))
    a('v_mov_b32 v%d, v6' % (V_T + 5))
    a('s_waitcnt vmcnt(9)')
    a('v_mov_b32 v9, 0')
    for i in range(8):
        a('v_dot2_f32_bf16 v9, v%d, v%d, v9' % (16 + i, 24 + i))
    a('s_nop 3')
    a('v_add_f32_dpp v9, v9, v9 quad_perm:[1,0,3,2] row_mask:0xf bank_mask:0xf')
    a('v_add_f32_dpp v9, v9, v9 quad_perm:[2,3,0,1] row_mask:0xf bank_mask:0xf')
    a('v_add_f32_dpp v9, v9, v9 row_half_mirror row_mask:0xf bank_mask:0xf')
    a('v_add_f32_dpp v9, v9, v9 row_mirror row_mask:0xf bank_mask:0xf')
    a('v_mov_b32 v10, v9')
    a('v_permlane16_swap_b32 v9, v10')
    a('v_add_f32 v9, v9, v10')
    a('v_mov_b32 v10, v9')
    a('v_permlane32_swap_b32 v9, v10')
    a('v_add_f32 v9, v9, v10')
    a('v_mul_f32 v9, 0x%x, v9' % f32bits(-LOG2E))
    a('v_exp_f32 v9, v9')
    a('v_add_f32 v9, 1.0, v9')
    a('v_rcp_f32 v9, v9')
    a('s_lshl_b32 s85, s%d, 8' % S_MT)
    a('s_add_u32 s85, s85, s84')
    a('s_lshl_b32 s85, s85, 2')
    a('s_add_u32 s85, s85, 0x%x' % G_OFF)
    a('v_mov_b32 v10, 0')
    a('s_mov_b64 exec, 1')
    a('buffer_store_dword v9, v10, s[%d:%d], s85 offen' % (SRD_WS, SRD_WS + 3))
    a('s_mov_b64 exec, -1')
    a('s_nop 1')
    for i in range(160):
        a('v_mov_b32 v%d, 0' % i)
    a('s_barrier')
    a('s_cmp_eq_u32 s%d, 1' % S_HALF)
    a('s_cbranch_scc1 K1_H1')

    for half in range(2):
        if half == 1:
            a.label('K1_H1')
        q = LgkmQ()
        for mb in range(4):
            k1_xread(a, q, mb, 0, 0, 0)
        for jn in range(10):
            k1_wread(a, q, half, jn, 0, 0)
        a('s_waitcnt lgkmcnt(0)')
        a('s_mov_b32 s%d, 7' % S_CNT)
        scratch = Asm()
        q0 = LgkmQ()
        k1_pair(scratch, q0, half, True, False)
        st = list(q0.q)
        q1 = LgkmQ(st)
        k1_pair(Asm(), q1, half, True, False)
        assert q1.q == st, (q1.q, st)
        a.label('K1_LOOP%d' % half)
        q = LgkmQ(st)
        k1_pair(a, q, half, True, False)
        a('s_sub_u32 s%d, s%d, 1' % (S_CNT, S_CNT))
        a('s_cmp_lg_u32 s%d, 0' % S_CNT)
        a('s_cbranch_scc1 K1_LOOP%d' % half)
        k1_pair(a, q, half, False, True)
        a('s_barrier')
        a('s_mov_b32 s84, s35')
        a('s_lshl_b32 s87, s%d, 4' % S_MT)
        a('s_lshl_b32 s88, s%d, 2' % S_MQ)
        a('s_add_u32 s87, s87, s88')
        a('s_lshl_b32 s87, s87, 10')
        a('s_lshl_b32 s88, s%d, 3' % S_J)
        a('s_add_u32 s88, s88, s%d' % S_MT)
        a('s_lshl_b32 s88, s88, 2')
        a('s_add_u32 s88, s88, s%d' % S_MQ)
        a('s_mul_i32 s88, s88, 3072')
        a('s_add_u32 s88, s88, 0x%x' % KVP_OFF)
        k1_gelu(a, 5 if half == 0 else 2, 162)
        a('v_mul_u32_u24 v161, %d, v%d' % (PK_PITCH, V_T + 4))
        a('v_lshl_add_u32 v161, v%d, 3, v161' % (V_T + 5))
        a('s_lshl_b32 s89, s%d, 5' % S_MQ)
        a('v_add_u32 v161, s89, v161')
        a('v_mul_u32_u24 v162, %d, v%d' % (V_PITCH, V_T + 4))
        a('v_lshl_add_u32 v162, v%d, 3, v162' % (V_T + 5))
        a('v_add_u32 v162, 0x%x, v162' % V_OFF)
        if half == 0:
            a('s_waitcnt lgkmcnt(0)')
            a('s_barrier')
            for ks in range(8):
                base = 64 + ks * 12
                for p in range(2):
                    row = 32 * ks + 16 * p
                    a('ds_read_b64_tr_b16 %s, v161 offset:%d' % (vr(base + 2 * p, 2), PK_OFF + row * PK_PITCH))
                    a('ds_read_b64_tr_b16 %s, v162 offset:%d' % (vr(base + 4 + 2 * p, 2), row * V_PITCH))
                    a('ds_read_b64_tr_b16 %s, v162 offset:%d' % (vr(base + 8 + 2 * p, 2), row * V_PITCH + 32))
            for ks in range(8):
                base = 64 + ks * 12
                a('s_waitcnt lgkmcnt(%d)' % min(15, (7 - ks) * 6))
                for db in range(2):
                    d = 24 + 4 * db
                    a('v_mfma_f32_16x16x32_bf16 %s, %s, %s, %s' % (vr(d, 4), vr(base, 4), vr(base + 4 + 4 * db, 4), '0' if ks == 0 else vr(d, 4)))
            for db in range(2):
                a('buffer_store_dwordx4 %s, v%d, s[%d:%d], s88 offen offset:%d' % (vr(24 + 4 * db, 4), V_LANE16, SRD_WS, SRD_WS + 3, db * 1024))
            a('s_endpgm')
        else:
            a('v_lshlrev_b32 v163, 6, v%d' % (V_T + 4))
            a('v_lshl_add_u32 v163, v%d, 3, v163' % (V_T + 5))
            a('v_add_u32 v163, 0x%x, v163' % WPHI_OFF)
            for fb in range(2):
                for p in range(2):
                    a('ds_read_b64_tr_b16 %s, v163 offset:%d' % (vr(4 * fb + 2 * p, 2), p * 1024 + fb * 32))
            a('s_lshl_b32 s89, s%d, 6' % S_MQ)
            a('v_add_u32 v164, s89, v%d' % (V_T + 2))
            a('v_mul_u32_u24 v165, %d, v164' % V_PITCH)
            a('v_mul_u32_u24 v164, %d, v164' % PK_PITCH)
            a('v_lshl_add_u32 v164, v%d, 3, v164' % (V_T + 3))
            a('v_lshl_add_u32 v165, v%d, 3, v165' % (V_T + 3))
            a('v_add_u32 v165, 0x%x, v165' % V_OFF)
            for mb in range(4):
                for db in range(2):
                    c = acc(8 + db, mb)
                    a('v_cvt_pk_bf16_f32 v%d, v%d, v%d' % (c, c, c + 1))
                    a('v_cvt_pk_bf16_f32 v%d, v%d, v%d' % (c + 1, c + 2, c + 3))
                    a('ds_write_b64 v165, %s offset:%d' % (vr(c, 2), mb * 16 * V_PITCH + db * 32))
            a('s_waitcnt lgkmcnt(0)')
            k1_phi(a, 6)
            for mb in range(4):
                pos = 24 + 4 * mb
                neg = acc(6, 0) + 8 * mb
                o = PK_OFF + mb * 16 * PK_PITCH
                a('ds_write_b64 v164, %s offset:%d' % (vr(pos, 2), o))
                a('ds_write_b64 v164, %s offset:%d' % (vr(pos + 2, 2), o + 32))
                a('ds_write_b64 v164, %s offset:%d' % (vr(neg, 2), o + 64))
                a('ds_write_b64 v164, %s offset:%d' % (vr(neg + 2, 2), o + 96))
            a('s_waitcnt lgkmcnt(0)')
            a('s_barrier')
            for ks in range(8):
                base = 96 + ks * 4
                for p in range(2):
                    row = 32 * ks + 16 * p
                    a('ds_read_b64_tr_b16 %s, v161 offset:%d' % (vr(base + 2 * p, 2), PK_OFF + row * PK_PITCH))
            for i in range(4):
                a('v_mov_b32 v%d, 0x3f803f80' % (56 + i))
            for ks in range(8):
                base = 96 + ks * 4
                a('s_waitcnt lgkmcnt(%d)' % min(15, (7 - ks) * 2))
                a('v_mfma_f32_16x16x32_bf16 v[60:63], %s, v[56:59], %s' % (vr(base, 4), '0' if ks == 0 else 'v[60:63]'))
            a('buffer_store_dwordx4 v[60:63], v%d, s[%d:%d], s88 offen offset:2048' % (V_LANE16, SRD_WS, SRD_WS + 3))
            k1_phi(a, 4)
            a('s_lshl_b32 s89, s%d, 18' % S_J)
            a('s_lshl_b32 s86, s87, 1')
            a('s_add_u32 s89, s89, s86')
            a('s_add_u32 s89, s89, 0x%x' % PHIQ_OFF)
            a('s_add_u32 s86, s89, 4096')
            for mb in range(4):
                so = 89 if mb < 2 else 86
                o = (mb & 1) * 2048
                a('buffer_store_dwordx4 %s, v%d, s[%d:%d], s%d offen offset:%d' % (vr(24 + 4 * mb, 4), V_LANE16, SRD_WS, SRD_WS + 3, so, o))
                a('buffer_store_dwordx4 %s, v%d, s[%d:%d], s%d offen offset:%d' % (vr(acc(4, 0) + 8 * mb, 4), V_LANE16, SRD_WS, SRD_WS + 3, so, o + 1024))
    a.label('K1_END')
    a('s_endpgm')


def gen_k2(a):
    a.raw('.p2align 8')
    a.raw('k2_kernel:')
    a('s_cmp_ge_u32 s2, 256')
    a('s_cbranch_scc1 K2_END')
    a('s_load_dwordx2 s[26:27], s[0:1], 88')
    a('v_lshrrev_b32 v1, 6, v0')
    a('v_and_b32 v2, 63, v0')
    a('v_readfirstlane_b32 s30, v1')
    a('s_and_b32 s28, s2, 31')
    a('s_lshr_b32 s29, s2, 5')
    a('v_lshlrev_b32 v3, 4, v2')
    a('v_and_b32 v4, 15, v2')
    a('v_lshlrev_b32 v4, 2, v4')
    a('s_waitcnt lgkmcnt(0)')
    make_srd(a, 8, 26, 27, WS_SIZE)
    a('s_lshl_b32 s12, s28, 5')
    a('s_add_u32 s12, s12, s30')
    a('s_mul_i32 s12, s12, 3072')
    a('s_add_u32 s12, s12, 0x%x' % KVP_OFF)
    for mt in range(8):
        for blk in range(3):
            a('buffer_load_dwordx4 %s, v3, s[8:11], s12 offen offset:%d' % (vr(64 + (mt * 3 + blk) * 4, 4), blk * 1024))
        a('s_add_u32 s12, s12, %d' % (4 * 3072))
    a('s_lshl_b32 s13, s29, 4')
    a('s_lshl_b32 s14, s30, 2')
    a('s_add_u32 s13, s13, s14')
    a('s_lshl_b32 s14, s28, 7')
    a('s_add_u32 s14, s14, s13')
    a('s_lshl_b32 s14, s14, 11')
    a('s_add_u32 s14, s14, 0x%x' % PHIQ_OFF)
    a('s_add_u32 s15, s14, 4096')
    for mb in range(4):
        for s in range(2):
            a('buffer_load_dwordx4 %s, v3, s[8:11], s%d offen offset:%d' % (vr(16 + (mb * 2 + s) * 4, 4), 14 if mb < 2 else 15, (mb & 1) * 2048 + s * 1024))
    a('s_lshl_b32 s16, s13, 6')
    a('s_add_u32 s16, s16, 0x%x' % G_OFF)
    for mb in range(4):
        a('buffer_load_dword v%d, v4, s[8:11], s16 offen offset:%d' % (48 + mb, mb * 64))
    a('s_waitcnt vmcnt(12)')
    for blk in range(3):
        for i in range(4):
            r = [64 + (mt * 3 + blk) * 4 + i for mt in range(8)]
            a('v_add_f32 v%d, v%d, v%d' % (r[0], r[0], r[1]))
            a('v_add_f32 v%d, v%d, v%d' % (r[2], r[2], r[3]))
            a('v_add_f32 v%d, v%d, v%d' % (r[4], r[4], r[5]))
            a('v_add_f32 v%d, v%d, v%d' % (r[6], r[6], r[7]))
            a('v_add_f32 v%d, v%d, v%d' % (r[0], r[0], r[2]))
            a('v_add_f32 v%d, v%d, v%d' % (r[4], r[4], r[6]))
            a('v_add_f32 v%d, v%d, v%d' % (r[0], r[0], r[4]))
    a('s_lshr_b32 s17, s30, 1')
    a('s_lshl_b32 s17, s17, 10')
    a('s_and_b32 s18, s30, 1')
    a('s_lshl_b32 s18, s18, 3')
    a('s_add_u32 s17, s17, s18')
    a('v_add_u32 v5, s17, v3')
    for blk in range(3):
        b = 64 + blk * 4
        a('v_cvt_pk_bf16_f32 v%d, v%d, v%d' % (b, b, b + 1))
        a('v_cvt_pk_bf16_f32 v%d, v%d, v%d' % (b + 1, b + 2, b + 3))
        a('ds_write_b64 v5, %s offset:%d' % (vr(b, 2), blk * 2048))
    a('s_waitcnt lgkmcnt(0)')
    a('s_barrier')
    for i in range(6):
        a('ds_read_b128 %s, v3 offset:%d' % (vr(96 + 4 * i, 4), i * 1024))
    a('s_waitcnt vmcnt(0) lgkmcnt(0)')
    for mb in range(4):
        for blk in range(3):
            d = 128 + (mb * 3 + blk) * 4
            a('v_mfma_f32_16x16x32_bf16 %s, %s, %s, 0' % (vr(d, 4), vr(96 + blk * 8, 4), vr(16 + mb * 8, 4)))
        for blk in range(3):
            d = 128 + (mb * 3 + blk) * 4
            a('v_mfma_f32_16x16x32_bf16 %s, %s, %s, %s' % (vr(d, 4), vr(96 + blk * 8 + 4, 4), vr(16 + mb * 8 + 4, 4), vr(d, 4)))
    a('s_add_u32 s19, s28, 112')
    a('s_lshl_b32 s19, s19, 7')
    a('s_add_u32 s19, s19, s13')
    a('s_lshl_b32 s19, s19, 10')
    for mb in range(4):
        d = 128 + mb * 12
        a('v_add_f32 v%d, 0x%x, v%d' % (d + 8, f32bits(1e-6), d + 8))
        a('v_rcp_f32 v%d, v%d' % (d + 8, d + 8))
        a('v_mul_f32 v%d, v%d, v%d' % (d + 8, d + 8, 48 + mb))
        for i in range(8):
            a('v_mul_f32 v%d, v%d, v%d' % (d + i, d + i, d + 8))
        for i in range(4):
            a('v_cvt_pk_bf16_f32 v%d, v%d, v%d' % (d + i, d + 2 * i, d + 2 * i + 1))
        a('buffer_store_dwordx4 %s, v3, s[8:11], s19 offen offset:%d' % (vr(d, 4), mb * 1024))
    a.label('K2_END')
    a('s_endpgm')


K3_P = 3
K3_NB = K3_P + 1
RED_PITCH = 272
K3_LDS = 4 * 128 * RED_PITCH


def gen_k3(a):
    a.raw('.p2align 8')
    a.raw('k3_kernel:')
    a('s_cmp_ge_u32 s2, 256')
    a('s_cbranch_scc1 K3_END')
    load_kernargs(a)
    VL16, VL16B, VBD, VBR, VG, VT = 128, 129, 130, 134, 138, 146
    a('v_lshrrev_b32 v%d, 6, v0' % VT)
    a('v_and_b32 v%d, 63, v0' % (VT + 1))
    a('v_mov_b32 v%d, v0' % (VT + 6))
    a('v_readfirstlane_b32 s30, v%d' % VT)
    L = VT + 1
    a('s_and_b32 s3, s2, 7')
    a('s_lshr_b32 s33, s2, 3')
    a('s_lshr_b32 s28, s3, 1')
    a('s_lshl_b32 s28, s28, 2')
    a('s_and_b32 s34, s33, 3')
    a('s_add_u32 s28, s28, s34')
    a('s_and_b32 s29, s3, 1')
    a('s_lshl_b32 s29, s29, 3')
    a('s_lshr_b32 s34, s33, 2')
    a('s_add_u32 s29, s29, s34')
    a('v_lshlrev_b32 v%d, 4, v%d' % (VL16, L))
    a('v_add_u32 v%d, 0x1000, v%d' % (VL16B, VL16))
    a('v_lshrrev_b32 v%d, 3, v%d' % (VT + 2, L))
    a('v_lshlrev_b32 v%d, 11, v%d' % (VT + 2, VT + 2))
    a('v_lshrrev_b32 v%d, 4, v%d' % (VT + 3, L))
    a('v_lshlrev_b32 v%d, 1, v%d' % (VT + 4, VT + 3))
    a('v_and_b32 v%d, 7, v%d' % (VT + 5, L))
    a('v_xor_b32 v%d, v%d, v%d' % (VT + 4, VT + 4, VT + 5))
    a('v_lshl_add_u32 v%d, v%d, 4, v%d' % (VT + 2, VT + 4, VT + 2))
    a('s_lshl_b32 s34, s29, 7')
    a('v_add_u32 v%d, s34, v%d' % (VBD, VT + 2))
    for qq in range(1, 4):
        a('v_add_u32 v%d, 0x%x, v%d' % (VBD + qq, qq * 15360, VBD))
    a('v_bfe_u32 v%d, v%d, 2, 2' % (VT + 2, L))
    a('v_lshl_add_u32 v%d, v%d, 2, v%d' % (VT + 2, VT + 3, VT + 2))
    a('v_bfe_u32 v%d, v%d, 1, 2' % (VT + 4, VT + 2))
    a('v_lshlrev_b32 v%d, 1, v%d' % (VT + 4, VT + 4))
    a('v_bfe_u32 v%d, v%d, 1, 1' % (VT + 5, L))
    a('v_xor_b32 v%d, v%d, v%d' % (VT + 4, VT + 4, VT + 5))
    a('v_lshlrev_b32 v%d, 7, v%d' % (VT + 2, VT + 2))
    a('v_lshl_add_u32 v%d, v%d, 4, v%d' % (VT + 2, VT + 4, VT + 2))
    a('v_and_b32 v%d, 1, v%d' % (VT + 5, L))
    a('v_lshl_add_u32 v%d, v%d, 3, v%d' % (VT + 2, VT + 5, VT + 2))
    a('s_lshl_b32 s35, s30, 14')
    a('v_add_u32 v%d, s35, v%d' % (VBR, VT + 2))
    for nb in range(1, 4):
        a('v_xor_b32 v%d, %d, v%d' % (VBR + nb, nb * 32, VBR))
    a('s_waitcnt lgkmcnt(0)')
    make_srd(a, 36, 26, 27, WS_SIZE)
    make_srd(a, 40, 18, 19, 3584 * 2048)
    make_srd(a, 44, 10, 11, 1024 * 2048)
    make_srd(a, 48, 22, 23, 2048 * 2048)
    a('v_and_b32 v%d, 15, v%d' % (VT + 2, L))
    a('v_lshlrev_b32 v%d, 2, v%d' % (VT + 2, VT + 2))
    a('s_lshl_b32 s52, s28, 9')
    a('s_add_u32 s52, s52, 0x%x' % G_OFF)
    for mb in range(8):
        a('buffer_load_dword v%d, v%d, s[36:39], s52 offen offset:%d' % (VG + mb, VT + 2, mb * 64))
    a('s_lshl_b32 s53, s28, 13')
    a('s_mul_i32 s54, s30, 28')
    a('s_lshl_b32 s55, s54, 17')
    a('s_add_u32 s55, s55, s53')
    a('s_lshl_b32 s56, s54, 16')
    a('s_lshl_b32 s54, s30, 3')
    a('s_add_u32 s57, s54, 112')
    a('s_lshl_b32 s57, s57, 17')
    a('s_add_u32 s57, s57, s53')
    a('s_lshl_b32 s58, s54, 16')

    NS = 36

    def issue_loads(t):
        buf = t % K3_NB
        hs = t < 28
        sa, sb, srd = (55, 56, 40) if hs else (57, 58, 44)
        a('s_add_u32 m0, s35, %d' % (buf * 4096))
        for mb in range(8):
            a('buffer_load_dwordx4 %s, v%d, s[36:39], s%d offen offset:%d' % (ar(buf * 32 + mb * 4, 4), VL16 if mb < 4 else VL16B, sa, (mb & 3) * 1024))
        for qq in range(4):
            a('buffer_load_dwordx4 v%d, s[%d:%d], s%d offen offset:%d lds' % (VBD + qq, srd, srd + 3, sb, qq * 1024))
        a('s_add_u32 s%d, s%d, 0x20000' % (sa, sa))
        a('s_add_u32 s%d, s%d, 0x10000' % (sb, sb))

    def bread(t, nb):
        buf = t % K3_NB
        fb = 128 + (t & 1) * 16 + nb * 4
        for p in range(2):
            a('ds_read_b64_tr_b16 %s, v%d offset:%d' % (ar(fb + 2 * p, 2), VBR + nb, buf * 4096 + p * 2048))

    for t in range(K3_P):
        issue_loads(t)
    for i in range(128):
        a('v_mov_b32 v%d, 0' % i)
    a('s_waitcnt vmcnt(%d)' % (12 * (K3_P - 1)))
    for nb in range(4):
        bread(0, nb)
    for t in range(NS):
        if t + K3_P < NS:
            issue_loads(t + K3_P)
        if t == 28:
            for mb in range(8):
                a('v_sub_f32 v%d, 1.0, v%d' % (VG + mb, VG + mb))
            for mb in range(8):
                for i in range(16):
                    a('v_mul_f32 v%d, v%d, v%d' % (mb * 16 + i, mb * 16 + i, VG + mb))
        a('s_waitcnt lgkmcnt(0)')
        buf = t % K3_NB
        for nb in range(4):
            if nb == 1 and t + 1 < NS:
                rem = min(NS - 1, t + K3_P) - (t + 1)
                a('s_waitcnt vmcnt(%d)' % (12 * rem))
            for mb in range(8):
                c = mb * 16 + nb * 4
                a('v_mfma_f32_16x16x32_bf16 %s, %s, %s, %s' % (vr(c, 4), ar(128 + (t & 1) * 16 + nb * 4, 4), ar(buf * 32 + mb * 4, 4), vr(c, 4)))
            if t + 1 < NS and nb >= 1:
                if nb == 1:
                    bread(t + 1, 0)
                    bread(t + 1, 1)
                else:
                    bread(t + 1, nb)
    a('s_barrier')
    a('v_and_b32 v%d, 15, v%d' % (VT + 2, L))
    a('v_mul_u32_u24 v%d, %d, v%d' % (VT + 2, RED_PITCH, VT + 2))
    a('v_lshl_add_u32 v%d, v%d, 4, v%d' % (VT + 2, VT + 3, VT + 2))
    a('s_mul_i32 s59, s30, %d' % (128 * RED_PITCH))
    a('v_add_u32 v%d, s59, v%d' % (VT + 2, VT + 2))
    for mb in range(8):
        for nb in range(4):
            a('ds_write_b128 v%d, %s offset:%d' % (VT + 2, vr(mb * 16 + nb * 4, 4), mb * 16 * RED_PITCH + nb * 64))
    a('s_waitcnt lgkmcnt(0)')
    a('s_barrier')
    T = VT + 6
    a('v_lshrrev_b32 v%d, 3, v%d' % (VT + 2, T))
    a('v_and_b32 v%d, 7, v%d' % (VT + 4, T))
    a('v_mul_u32_u24 v%d, %d, v%d' % (VT + 5, RED_PITCH, VT + 2))
    a('v_lshl_add_u32 v%d, v%d, 5, v%d' % (VT + 5, VT + 4, VT + 5))
    a('v_add_u32 v%d, 0x%x, v%d' % (VT + 7, 2 * 128 * RED_PITCH, VT + 5))
    for ps in range(4):
        for w in range(4):
            for hh in range(2):
                d = ps * 32 + w * 8 + hh * 4
                a('ds_read_b128 %s, v%d offset:%d' % (vr(d, 4), VT + 5 if w < 2 else VT + 7, (w & 1) * 128 * RED_PITCH + ps * 32 * RED_PITCH + hh * 16))
    a('v_lshlrev_b32 v%d, 11, v%d' % (VT + 2, VT + 2))
    a('v_lshl_add_u32 v%d, v%d, 4, v%d' % (VT + 2, VT + 4, VT + 2))
    a('s_lshl_b32 s60, s28, 18')
    a('s_lshl_b32 s61, s29, 7')
    a('s_add_u32 s60, s60, s61')
    for ps in range(4):
        a('s_waitcnt lgkmcnt(%d)' % min(15, (3 - ps) * 8))
        d = ps * 32
        for i in range(0, 8, 2):
            a('v_pk_add_f32 %s, %s, %s' % (vr(d + i, 2), vr(d + i, 2), vr(d + 8 + i, 2)))
            a('v_pk_add_f32 %s, %s, %s' % (vr(d + 16 + i, 2), vr(d + 16 + i, 2), vr(d + 24 + i, 2)))
        for i in range(0, 8, 2):
            a('v_pk_add_f32 %s, %s, %s' % (vr(d + i, 2), vr(d + i, 2), vr(d + 16 + i, 2)))
        for i in range(4):
            a('v_cvt_pk_bf16_f32 v%d, v%d, v%d' % (d + i, d + 2 * i, d + 2 * i + 1))
        a('buffer_store_dwordx4 %s, v%d, s[48:51], s60 offen' % (vr(d, 4), VT + 2))
        a('s_add_u32 s60, s60, 0x10000')
    a.label('K3_END')
    a('s_endpgm')


def descriptor(name, vgpr, accum, sgpr=102):
    return '''.p2align 6
.amdhsa_kernel %s
  .amdhsa_next_free_vgpr %d
  .amdhsa_next_free_sgpr %d
  .amdhsa_accum_offset %d
  .amdhsa_group_segment_fixed_size 0
  .amdhsa_kernarg_size 96
  .amdhsa_user_sgpr_count 2
  .amdhsa_user_sgpr_kernarg_segment_ptr 1
  .amdhsa_system_sgpr_workgroup_id_x 1
  .amdhsa_float_denorm_mode_32 3
.end_amdhsa_kernel
''' % (name, vgpr, sgpr, accum)


def main():
    a = Asm()
    hdr = open('cdna_kernels/%s.s.ref' % NAME).read().split('; Override launch')[0]
    out = hdr
    out += '; @launch kernel=k1_kernel grid=(256,1,1) block=(512,1,1) lds=%d\n' % K1_LDS
    out += '; @launch kernel=k2_kernel grid=(256,1,1) block=(256,1,1) lds=6144\n'
    out += '; @launch kernel=k3_kernel grid=(256,1,1) block=(256,1,1) lds=%d\n' % K3_LDS
    out += '.amdgcn_target "amdgcn-amd-amdhsa--gfx950"\n.text\n'
    gen_k1(a)
    a.hist = []
    gen_k2(a)
    a.hist = []
    gen_k3(a)
    out += a.text()
    out += '.section .rodata,"a"\n'
    out += descriptor('k1_kernel', 256, 184)
    out += descriptor('k2_kernel', 176, 176)
    out += descriptor('k3_kernel', 320, 160)
    dst = sys.argv[1] if len(sys.argv) > 1 else 'cdna_kernels/%s.s' % NAME
    open(dst, 'w').write(out)
    print('wrote', dst, 'instructions:', a.count)


if __name__ == '__main__':
    main()
```
